```python
import torch

def _softmax(x, axis=-1):
    return torch.softmax(x, dim=axis)

def _gelu(x):
    return torch.nn.functional.gelu(x, approximate='tanh')

def _silu(x):
    return torch.nn.functional.silu(x)

def _sigmoid(x):
    return torch.sigmoid(x)

def _layernorm(x, axis=-1, eps=1e-05):
    m = x.mean(dim=axis, keepdim=True)
    v = x.var(dim=axis, keepdim=True, unbiased=False)
    return (x - m) / torch.sqrt(v + eps)

def _scatter_add(tgt, idx, src, axis=0):
    return tgt.clone().index_add_(axis, idx, src)

def _segment_sum(src, seg, n):
    out = torch.zeros((n,) + src.shape[1:], dtype=src.dtype)
    return out.index_add_(0, seg, src)

def _pad(x, pw):
    flat = tuple((v for pair in reversed(pw) for v in pair))
    return torch.nn.functional.pad(x, flat)
kernel_name = 'standalone__conformer_conv_module__speech'

def setup_inputs():

    _w = lambda a: (lambda t: t.to(torch.bfloat16) if t.is_floating_point() else t)(torch.as_tensor(a))
    B, T, D, K = (2, 16000, 256, 31)
    return {'x': _w((lambda *s: torch.randn(*s, dtype=torch.bfloat16) * 0.2)(B, T, D)), 'w_pw1': _w((lambda *s: torch.randn(*s, dtype=torch.bfloat16) * 0.2)(D, 2 * D)), 'dw': _w((lambda *s: torch.randn(*s, dtype=torch.bfloat16) * 0.2)(K, D)), 'w_pw2': _w((lambda *s: torch.randn(*s, dtype=torch.bfloat16) * 0.05)(D, D))}

def reference(x, w_pw1, dw, w_pw2):
    B, T, D = x.shape
    K = dw.shape[0]
    h = x @ w_pw1
    a, b = (h[..., :D].clone(), h[..., D:].clone())
    h = a * _sigmoid(b)
    pad = K // 2
    hp = _pad(h, ((0, 0), (pad, pad), (0, 0)))
    out = torch.zeros_like(h)
    for i in range(K):
        out = out + hp[:, i:i + T, :] * dw[i][None, None, :]
    return _silu(out) @ w_pw2
```

```python
def R(a, n=1): return set(range(a, a + n))
def vr(a, n=1): return f"v{a}" if n == 1 else f"v[{a}:{a+n-1}]"

class I:
    def __init__(s, t, k, r=(), w=(), c=None, needv=(), needd=(), tok=None, lg0=False, vm0=False):
        s.t = t; s.k = k; s.r = set(r); s.w = set(w); s.c = set(c) if c else set()
        s.needv = list(needv); s.needd = list(needd); s.tok = tok; s.lg0 = lg0; s.vm0 = vm0
    @property
    def cost(s): return {'valu': 4, 'trans': 8}.get(s.k, 0)

MF = {'mfma4': 0, 'mfma16': 1, 'mfma32': 2}
H_VALU = (5, 8, 12); H_OVL = (4, 6, 10); H_SAME = (2, 0, 0)

def valu(t, w, r): return I(t, 'valu', r, w)
def trans(t, w, r): return I(t, 'trans', r, w)
def salu(t): return I(t, 'salu')
def m0(t): return I(t, 'm0')
def mfma(kind, d, a, b, first=False):
    op, nd, na = {'mfma4': ('v_mfma_f32_4x4x4_16b_bf16', 4, 2), 'mfma16': ('v_mfma_f32_16x16x32_bf16', 4, 4),
                  'mfma32': ('v_mfma_f32_32x32x16_bf16', 16, 4)}[kind]
    return I(f"{op} {vr(d,nd)}, {vr(a,na)}, {vr(b,na)}, {'0' if first else vr(d,nd)}", kind,
             R(a, na) | R(b, na), R(d, nd), c=None if first else R(d, nd))
def off(o):
    assert 0 <= o < 65536, o
    return f" offset:{o}" if o else ""
def dsr128(d, a, o, **kw): return I(f"ds_read_b128 {vr(d,4)}, v{a}{off(o)}", 'dsr', {a}, R(d, 4), **kw)
def dstr(d, a, o, **kw): return I(f"ds_read_b64_tr_b16 {vr(d,2)}, v{a}{off(o)}", 'dsr', {a}, R(d, 2), **kw)
def dsw128(a, s, o, **kw): return I(f"ds_write_b128 v{a}, {vr(s,4)}{off(o)}", 'dsw', {a} | R(s, 4), (), **kw)
def bperm(d, a, s): return I(f"ds_bpermute_b32 v{d}, v{a}, v{s}", 'dsr', {a, s}, {d})
def bar(**kw): return I("s_barrier", 'bar', **kw)

def finalize(prog):
    out = []; pos = 0
    lg = []; vm = []
    lastw = {}
    storew = {}
    lastm0 = -10
    stats = {'wait': 0, 'nop': 0, 'n': 0}
    done_v = set(); done_d = set()
    def need(q, regs, toks, done, allq):
        idx = -1
        for i, (wr, tk) in enumerate(q):
            if (wr & regs) or (tk is not None and tk in toks) or allq: idx = i
        for tk in toks:
            assert tk in done or any(t == tk for _, t in q), f"token {tk} never issued"
        return idx
    for ins in prog:
        if ins.k == 'label' or ins.k == 'cmt':
            out.append(ins.t); continue
        regs = ins.r | ins.w | ins.c
        ws = []
        i = need(vm, regs, ins.needv, done_v, ins.vm0)
        if i >= 0:
            n = min(len(vm) - 1 - i, 63); ws.append(f"vmcnt({n})")
            for _, tk in vm[:len(vm) - n]: done_v.add(tk)
            vm = vm[len(vm) - n:]
        i = need(lg, regs, ins.needd, done_d, ins.lg0)
        if i >= 0:
            n = min(len(lg) - 1 - i, 15); ws.append(f"lgkmcnt({n})")
            for _, tk in lg[:len(lg) - n]: done_d.add(tk)
            lg = lg[len(lg) - n:]
        if ws:
            out.append("s_waitcnt " + " ".join(ws)); pos += 1; stats['wait'] += 1
        req = 0
        def rq(p, k):
            nonlocal req
            req = max(req, k - (pos - p - 1))
        if ins.k in MF:
            for g in regs:
                if g not in lastw: continue
                p, k, ds = lastw[g]
                if k in ('valu', 'trans'):
                    if g in ins.r or g in ins.c: rq(p, 2)
                elif k in MF:
                    if g in ins.r: rq(p, H_VALU[MF[k]])
                    elif g in ins.c and ds == ins.c and k == ins.k: rq(p, H_SAME[MF[k]])
                    else: rq(p, H_OVL[MF[k]])
        else:
            for g in regs:
                if g not in lastw: continue
                p, k, ds = lastw[g]
                if k in MF: rq(p, H_VALU[MF[k]])
                elif k == 'trans' and g in ins.r and ins.k != 'trans': rq(p, 1)
        for g in ins.w:
            if g in storew: rq(storew[g], 2)
        if ins.k == 'dma': rq(lastm0, 1)
        while req > 0:
            n = min(req, 16); out.append(f"s_nop {n-1}"); pos += n; req -= n; stats['nop'] += 1
        out.append(ins.t); stats['n'] += 1
        if ins.k == 'stamp':
            out.append("s_waitcnt lgkmcnt(0)"); pos += 1
            for _, tk in lg: done_d.add(tk)
            lg = []
        for g in ins.w:
            lastw[g] = (pos, ins.k, ins.w)
        if ins.k == 'vms':
            for g in ins.r: storew[g] = pos
        if ins.k == 'm0': lastm0 = pos
        if ins.k in ('dsr', 'dsw'): lg.append((ins.w, ins.tok))
        if ins.k in ('vml', 'dma', 'vms'): vm.append((ins.w, ins.tok))
        pos += 1
    return out, stats

class Weaver:
    def __init__(s, prog, b32=24, b4=4, b16=8):
        s.p = prog; s.q = []; s.side = []; s.credit = 0; s.b = {'mfma32': b32, 'mfma4': b4, 'mfma16': b16}
        s.hold = 0
    def push(s, l, hold=0):
        if hold: s.q.append(('hold', hold))
        s.q += l
    def pushside(s, l): s.side += l
    def run(s, main, side_per=1.0, b32=None):
        acc = 0.0
        for ins in main:
            s.p.append(ins)
            if ins.k in MF:
                b = s.b[ins.k] if not (b32 is not None and ins.k == 'mfma32') else b32
                s.credit = min(s.credit, 4) + b
                if s.hold > 0: s.hold -= 1
                while s.q and s.hold == 0:
                    h = s.q[0]
                    if isinstance(h, tuple):
                        s.hold = h[1]; s.q.pop(0); break
                    if h.cost > s.credit: break
                    s.credit -= h.cost; s.p.append(s.q.pop(0))
                acc += side_per * (1.0 if ins.k == 'mfma32' else 0.25 if ins.k == 'mfma4' else 0.5)
                while acc >= 1.0 and s.side:
                    acc -= 1.0
                    g = s.side.pop(0)
                    s.p.extend(g if isinstance(g, list) else [g])
    def drain(s, n=None, until=None):
        s.hold = 0
        while s.q:
            if until is not None and not any(x is until for x in s.q): break
            h = s.q.pop(0)
            if not isinstance(h, tuple): s.p.append(h)
    def drainside(s, until=None):
        while s.side:
            if until is not None and not any((x is until) or (isinstance(x, list) and any(y is until for y in x)) for x in s.side): break
            g = s.side.pop(0)
            s.p.extend(g if isinstance(g, list) else [g])
```

```python
import sys, struct
from emit import *

NAME = "standalone__conformer_conv_module__speech"
def fbits(x): return "0x%08x" % struct.unpack("<I", struct.pack("<f", x))[0]
LOG2E = 1.4426950408889634; LN2 = 0.6931471805599453

DEF = dict(x1pos=3, x2pos=15, x3pos=15, c1start=8, defer=4, stamps=False, xflag="nt", oflag="sc1", b32=24, rot=True,
           prio=False, bar0=True, name=NAME)

HSZ = 10240; XB = 81920; XSZ = 16640
A_X, A_WTR, G_X, G_W1, G_W2, A_HW0, A_HW1, C_L, C_N = 1, 2, 3, 4, 5, 6, 7, 8, 9
A_HR = [10, 11, 12, 13]; A_YW, A_W2TR, A_OW0, A_OR, A_TTR, A_BP = 14, 15, 16, 17, 18, 19
A_YTR = A_WTR; A_OW1 = G_W1; TMP = 0
FB = [20, 24, 28]
ACC = [32, 64, 96]
def W1(s, ab): return 128 + 8 * s + 4 * ab
def W2(k): return 96 + 4 * k if k < 8 else 220 + 4 * (k - 8)
def TT(g, s): return 128 + 18 * g + 2 * s
CW = [164, 200]; DD = [184, 192]; OACC = [32, 48]; YB = [20, 24, 28, 252]
S_X, S_W1, S_DW, S_W2, S_O = 8, 12, 16, 20, 24
S_WV, S_HB, S_ROT, S_XD, S_ST = 28, 29, 30, 31, 33
def srd(b): return f"s[{b}:{b+3}]"

def gen(**kw):
    P = dict(DEF); P.update(kw)
    p = []; stamps = []
    def raw(t, k='salu'):
        for l in t.strip().split("\n"): p.append(I(l.strip(), k))
    def stamp(n):
        if not P['stamps']: return []
        i = len(stamps); stamps.append(n)
        return [I(f"s_memtime s[{60+2*i}:{61+2*i}]", 'stamp')]
    def V(t, w, r=()): p.append(valu(t, {w}, set(r)))
    if P['stamps']:
        raw(f"s_memrealtime s[56:57]\ns_memtime s[58:59]\ns_load_dwordx2 s[4:5], s[0:1], {40 if P.get('dbg') else 48}")
    raw(f"""s_load_dwordx8 s[36:43], s[0:1], 0
s_load_dwordx2 s[44:45], s[0:1], 32
s_cmp_ge_u32 s2, 250
s_cbranch_scc1 L_end""")
    V("v_lshrrev_b32 v20, 6, v0", 20, [0])
    V("v_and_b32 v0, 63, v0", 0, [0])
    raw(f"""v_readfirstlane_b32 s{S_WV}, v20
s_and_b32 s46, s2, 7
s_lshr_b32 s47, s2, 3
s_mul_i32 s48, s46, 31
s_min_u32 s46, s46, 2
s_add_u32 s48, s48, s46
s_add_u32 s48, s48, s47""")
    raw(f"s_and_b32 s49, s47, 15" if P['rot'] else "s_mov_b32 s49, 0")
    raw(f"s_lshl_b32 s{S_ROT}, s49, 14\ns_lshl_b32 s49, s49, 1\ns_lshl_b32 s50, s{S_WV}, 10")
    V("v_add_u32 v21, s49, v0", 21, [0])
    V("v_and_b32 v21, 31, v21", 21, [21])
    V("v_lshrrev_b32 v22, 5, v0", 22, [0])
    V("v_lshlrev_b32 v23, 13, v22", 23, [22])
    V("v_lshl_add_u32 v21, v21, 4, v23", 21, [21, 23])
    V(f"v_add_u32 v{G_X}, s50, v21", G_X, [21])
    raw(f"""s_cmp_eq_u32 s48, 0
s_cselect_b32 s51, 0x80000000, 0
s_cmp_eq_u32 s48, 125
s_cselect_b32 s51, 0x80000000, s51""")
    V("v_xor_b32 v23, 1, v22", 23, [22])
    V("v_mul_lo_u32 v23, v23, s51", 23, [23])
    V(f"v_or_b32 v24, v23, v{G_X}", 24, [23, G_X])
    raw(f"s_lshl_b32 s50, s{S_WV}, 6")
    V("v_lshrrev_b32 v25, 2, v0", 25, [0])
    V("v_and_b32 v26, 3, v0", 26, [0])
    V("v_lshlrev_b32 v27, 4, v26", 27, [26])
    V("v_add_u32 v27, s50, v27", 27, [27])
    V(f"v_lshl_add_u32 v{G_W1}, v25, 10, v27", G_W1, [25, 27])
    V(f"v_lshl_add_u32 v{G_W2}, v25, 9, v27", G_W2, [25, 27])
    raw(f"""s_mul_i32 s{S_HB}, s{S_WV}, {HSZ}
s_mul_i32 s{S_XD}, s{S_WV}, 2080
s_add_u32 s{S_XD}, s{S_XD}, {XB}
s_lshl_b32 s{S_ST}, s{S_WV}, 12
s_add_u32 s{S_ST}, s{S_ST}, {XB + 2*XSZ}
s_lshl_b32 s52, s48, 16
s_mov_b32 s{S_X+2}, {160*512}
s_cmp_eq_u32 s48, 124
s_cselect_b32 s{S_X+2}, {144*512}, s{S_X+2}
s_cmp_eq_u32 s48, 249
s_cselect_b32 s{S_X+2}, {144*512}, s{S_X+2}
s_mov_b32 s{S_X+3}, 0x20000
s_mov_b32 s{S_W1+2}, 262144
s_mov_b32 s{S_W1+3}, 0x20000
s_mov_b32 s{S_W2+2}, 131072
s_mov_b32 s{S_W2+3}, 0x20000
s_waitcnt lgkmcnt(0)
s_add_u32 s{S_X}, s36, s52
s_addc_u32 s{S_X+1}, s37, 0
s_sub_u32 s{S_X}, s{S_X}, 8192
s_subb_u32 s{S_X+1}, s{S_X+1}, 0""")
    XBUF = [0, 2, 3, 1, 0]
    def xdma(c):
        l = []
        v = 24 if c == 0 else G_X
        so = "0"
        if c: l.append(salu(f"s_mov_b32 s53, {c*16384}")); so = "s53"
        for i in range(2):
            l.append(m0(f"s_add_u32 m0, s{S_XD}, {XBUF[c]*XSZ + i*(1040-512)}"))
            l.append(I(f"buffer_load_dwordx4 v{v}, {srd(S_X)}, {so} offen{off(512*i)} {P['xflag']} lds", 'dma', {v}, tok=f"X{c}.{i}"))
        return l
    p += xdma(0)
    raw(f"""s_mov_b32 s{S_W1}, s38
s_mov_b32 s{S_W1+1}, s39
s_mov_b32 s{S_W2}, s42
s_mov_b32 s{S_W2+1}, s43
s_lshl_b32 s53, s47, 12
s_lshl_b32 s54, s{S_WV}, 9
s_add_u32 s53, s53, s54""")
    V("v_lshlrev_b32 v28, 3, v0", 28, [0])
    p.append(I(f"buffer_load_dwordx2 v[126:127], v28, {srd(S_W2)}, s53 offen", 'vml', {28}, {126, 127}))
    if P['bar0']: p.append(bar())
    def w1dma(s):
        slot = s % 5
        nd = [f"T{s-5}"] if s >= 5 else []
        l = [m0(f"s_add_u32 m0, s{S_HB}, {slot*2048}"),
             I(f"buffer_load_dwordx4 v{G_W1}, {srd(S_W1)}, s{S_ROT} offen lds", 'dma', {G_W1}, tok=f"W{s}a", needd=nd),
             m0(f"s_add_u32 m0, s{S_HB}, {slot*2048 + 512}"),
             I(f"buffer_load_dwordx4 v{G_W1}, {srd(S_W1)}, s{S_ROT} offen offset:512 lds", 'dma', {G_W1}, tok=f"W{s}b"),
             salu(f"s_add_u32 s{S_ROT}, s{S_ROT}, 16384"), salu(f"s_and_b32 s{S_ROT}, s{S_ROT}, 0x3ffff")]
        for c in (1, 2, 3):
            if P[f'x{c}pos'] == s: l += xdma(c)
        return l
    for s in range(5): p += w1dma(s)
    raw(f"""s_mov_b32 s{S_DW}, s40
s_mov_b32 s{S_DW+1}, s41
s_mov_b32 s{S_DW+2}, 15872
s_mov_b32 s{S_DW+3}, 0x20000
s_add_u32 s{S_O}, s44, s52
s_addc_u32 s{S_O+1}, s45, 0
s_mov_b32 s{S_O+2}, 65536
s_mov_b32 s{S_O+3}, 0x20000""")
    V("v_bfe_u32 v27, v0, 3, 2", 27, [0])
    V("v_lshl_add_u32 v27, v27, 2, v26", 27, [27, 26])
    V("v_mul_u32_u24 v27, 1040, v27", 27, [27])
    V("v_bfe_u32 v28, v0, 2, 1", 28, [0])
    V("v_lshl_add_u32 v27, v28, 9, v27", 27, [27, 28])
    V("v_lshl_add_u32 v27, v22, 4, v27", 27, [27, 22])
    V(f"v_add_u32 v{A_X}, {XB}, v27", A_X, [27])
    V("v_and_b32 v29, 3, v25", 29, [25])
    V("v_lshl_add_u32 v27, v22, 3, v29", 27, [22, 29])
    V("v_lshlrev_b32 v27, 6, v27", 27, [27])
    V("v_bfe_u32 v28, v0, 4, 1", 28, [0])
    V("v_lshl_add_u32 v30, v28, 5, v27", 30, [27, 28])
    V("v_lshl_add_u32 v30, v26, 3, v30", 30, [26, 30])
    V(f"v_add_u32 v{A_WTR}, s{S_HB}, v30", A_WTR, [30])
    V("v_lshl_add_u32 v30, v28, 4, v27", 30, [27, 28])
    V("v_and_b32 v31, 1, v0", 31, [0])
    V("v_lshl_add_u32 v30, v31, 5, v30", 30, [31, 30])
    V("v_bfe_u32 v31, v0, 1, 1", 31, [0])
    V("v_lshl_add_u32 v30, v31, 3, v30", 30, [31, 30])
    V(f"v_add_u32 v{A_W2TR}, s{S_ST}, v30", A_W2TR, [30])
    V("v_lshrrev_b32 v30, 4, v0", 30, [0])
    V("v_sub_u32 v30, v29, v30", 30, [29, 30])
    V("v_add_u32 v30, 123, v30", 30, [30])
    V("v_lshlrev_b32 v30, 6, v30", 30, [30])
    V("v_lshl_add_u32 v30, v26, 3, v30", 30, [26, 30])
    V(f"v_add_u32 v{A_TTR}, s{S_HB}, v30", A_TTR, [30])
    V("v_lshl_add_u32 v30, v26, 4, v25", 30, [26, 25])
    V(f"v_lshlrev_b32 v{A_BP}, 2, v30", A_BP, [30])
    V("v_and_b32 v27, 31, v0", 27, [0])
    V("v_lshlrev_b32 v28, 3, v22", 28, [22])
    V("v_xor_b32 v28, v27, v28", 28, [27, 28])
    V("v_lshlrev_b32 v28, 4, v28", 28, [28])
    V("v_lshl_add_u32 v28, v22, 10, v28", 28, [22, 28])
    V(f"v_add_u32 v{A_HW0}, s{S_HB}, v28", A_HW0, [28])
    V("v_xor_b32 v28, 64, v28", 28, [28])
    V("v_add_u32 v28, 512, v28", 28, [28])
    V(f"v_add_u32 v{A_HW1}, s{S_HB}, v28", A_HW1, [28])
    for n in range(4):
        V(f"v_add_u32 v28, {n}, v26", 28, [26])
        V("v_and_b32 v30, 3, v28", 30, [28])
        V("v_lshlrev_b32 v30, 2, v30", 30, [30])
        V("v_xor_b32 v30, v25, v30", 30, [25, 30])
        V("v_lshlrev_b32 v30, 4, v30", 30, [30])
        V("v_lshl_add_u32 v30, v28, 9, v30", 30, [28, 30])
        V(f"v_add_u32 v{A_HR[n]}, s{S_HB}, v30", A_HR[n], [30])
    raw(f"s_lshl_b32 s53, s{S_WV}, 11\ns_add_u32 s53, s53, {XB}")
    V("v_lshlrev_b32 v28, 4, v0", 28, [0])
    V(f"v_add_u32 v{A_YW}, s53, v28", A_YW, [28])
    V("v_bfe_u32 v28, v0, 1, 2", 28, [0])
    V("v_lshlrev_b32 v30, 1, v22", 30, [22])
    V("v_xor_b32 v28, v28, v30", 28, [28, 30])
    V("v_lshlrev_b32 v28, 4, v28", 28, [28])
    V("v_lshl_add_u32 v28, v27, 6, v28", 28, [27, 28])
    V(f"v_add_u32 v{A_OW0}, s{S_HB}, v28", A_OW0, [28])
    V("v_bfe_u32 v28, v0, 3, 2", 28, [0])
    V("v_xor_b32 v28, v28, v26", 28, [28, 26])
    V("v_lshlrev_b32 v28, 4, v28", 28, [28])
    V("v_lshl_add_u32 v28, v25, 6, v28", 28, [25, 28])
    V(f"v_add_u32 v{A_OR}, s{S_HB}, v28", A_OR, [28])
    V(f"v_mov_b32 v{C_L}, {fbits(-LOG2E)}", C_L)
    V(f"v_mov_b32 v{C_N}, {fbits(-LN2)}", C_N)
    p += stamp("pro")

    def skew(stages):
        out = []
        for e in range(0, len(stages), 2):
            a, b = stages[e], stages[e + 1]
            for x, y in zip(a, b): out += [x, y]
            out += b[len(a):]
        return out
    def glu(c, acc):
        a0, b0 = acc, acc + 16; st = []
        for r in range(16):
            a, b = a0 + r, b0 + r
            l = [valu(f"v_mul_f32 v{b}, v{C_L}, v{b}", {b}, {b, C_L}), trans(f"v_exp_f32 v{b}, v{b}", {b}, {b}),
                 valu(f"v_fmaak_f32 v{b}, v{b}, v{C_N}, {fbits(-LN2)}", {b}, {b, C_N}), trans(f"v_rcp_f32 v{b}, v{b}", {b}, {b}),
                 valu(f"v_mul_f32 v{a}, v{a}, v{b}", {a}, {a, b})]
            if r & 1:
                l.append(valu(f"v_cvt_pk_bf16_f32 v{a0+r//2}, v{a-1}, v{a}", {a0 + r // 2}, {a - 1, a}))
                if r == 7: l.append(dsw128(A_HW0, a0, c * 2048))
                if r == 15: l.append(dsw128(A_HW1, a0 + 4, c * 2048))
            st.append(l)
        return skew(st)
    YBUF = [1, 0]
    def silu(j, g, t0, t1):
        d0 = DD[g]; st = []
        for r in range(8):
            d = d0 + r; t = (t0, t1)[r & 1]
            l = [trans(f"v_exp_f32 v{t}, v{d}", {t}, {d}),
                 valu(f"v_fmaak_f32 v{t}, v{t}, v{C_L}, {fbits(-LOG2E)}", {t}, {t, C_L}), trans(f"v_rcp_f32 v{t}, v{t}", {t}, {t}),
                 valu(f"v_mul_f32 v{d}, v{d}, v{t}", {d}, {d, t})]
            if r & 1:
                l.append(valu(f"v_cvt_pk_bf16_f32 v{d0+r//2}, v{d-1}, v{d}", {d0 + r // 2}, {d - 1, d}))
                if r == 7: l.append(dsw128(A_YW, d0, YBUF[j & 1] * XSZ + g * 1024))
            st.append(l)
        return skew(st)
    def convrd(j, g, cw):
        return [dsr128(cw + 4 * n, A_HR[n & 3], j * 2048 + (n >> 2) * 2048 + g * 256) for n in range(5)]
    def conv(g, cw):
        l = []
        for s in range(9):
            for q in range(2): l.append(mfma('mfma4', DD[g] + 4 * q, TT(g, s), cw + 2 * (s + q), first=(s == 0)))
        return l
    def yrd(j, k):
        b = YB[k % len(YB)]
        return [dstr(b + 2 * u, A_YTR, YBUF[j & 1] * XSZ + k * 1024 + u * 256) for u in range(2)]
    def g2(j, pre):
        l = []; la = len(YB) - 1
        for k in range(16):
            if k + la < 16: l += yrd(j, k + la)
            l += pre.get(k, [])
            l.append(mfma('mfma32', OACC[j & 1], W2(k), YB[k % len(YB)], first=(k == 0)))
        return l
    def outp(j):
        o = OACC[j & 1]; l = []
        for r in range(8):
            l.append(valu(f"v_cvt_pk_bf16_f32 v{o+r}, v{o+2*r}, v{o+2*r+1}", {o + r}, {o + 2 * r, o + 2 * r + 1}))
            if r == 3: l.append(dsw128(A_OW0, o, 0))
        l.append(dsw128(A_OW1, o + 4, 0))
        l += [dsr128(o + 8, A_OR, 0), dsr128(o + 12, A_OR, 1024)]
        return l
    def outst(j):
        o = OACC[j & 1]; l = []
        for v in range(2):
            l.append(salu(f"s_mov_b32 s53, {j*16384 + v*8192}"))
            l.append(I(f"buffer_store_dwordx4 {vr(o+8+4*v,4)}, v{G_W2}, {srd(S_O)}, s53 offen {P['oflag']}", 'vms', R(o + 8 + 4 * v, 4) | {G_W2}))
        return l
    def w2dma(k):
        nd = [f"U{k-4}"] if k >= 4 else []
        return [salu(f"s_mov_b32 s54, {k*8192}"), m0(f"s_add_u32 m0, s{S_ST}, {(k%4)*1024}"),
                I(f"buffer_load_dwordx4 v{G_W2}, {srd(S_W2)}, s54 offen lds", 'dma', {G_W2}, tok=f"V{k}", needd=nd)]
    def w2rd(k):
        return [dstr(W2(k), A_W2TR, (k % 4) * 1024, needv=[f"V{k}"]), dstr(W2(k) + 2, A_W2TR, (k % 4) * 1024 + 256, tok=f"U{k}")]
    def dwdma():
        l = []
        for m, row in enumerate((0, 16, 24)):
            l += [valu(f"v_add_u32 v{TMP}, {(row*512 - 2048) & 0xffffffff}, v{G_W2}", {TMP}, {G_W2}),
                  m0(f"s_add_u32 m0, s{S_HB}, {7680 + row*64}"),
                  I(f"buffer_load_dwordx4 v{TMP}, {srd(S_DW)}, 0 offen lds", 'dma', {TMP}, tok=f"D{m}", needd=["T15"])]
        return l

    steps = []
    n1 = 16 - P['defer']; span = 16 - P['c1start']; done = 0
    for s in range(16):
        if s >= P['c1start']:
            want = min(s, -(-n1 * (s - P['c1start'] + 1) // span))
            while done < want: steps.append((1, done)); done += 1
        steps.append((0, s))
    while done < 16: steps.append((1, done)); done += 1
    for c in (2, 3, 4): steps += [(c, s) for s in range(16)]
    ACCOF = [0, 1, 2, 0, 1]
    W = Weaver(p, b32=P['b32'])
    seen = set()
    def xrd(n):
        c, s = steps[n]; l = []
        if c not in seen:
            seen.add(c)
            l += [bar(needv=[f"X{c}.0", f"X{c}.1"], lg0=True)] + stamp(f"B{c}")
            if c == 2: l += xdma(4)
            if c == 3: W.pushside([w2dma(k) for k in range(4)])
        l.append(dsr128(FB[n % 3], A_X, XBUF[c] * XSZ + s * 32))
        return l
    def trw(s):
        sl = (s % 5) * 2048
        return [dstr(W1(s, 0), A_WTR, sl, needv=[f"W{s}a"]), dstr(W1(s, 0) + 2, A_WTR, sl + 256),
                dstr(W1(s, 1), A_WTR, sl + 1024, needv=[f"W{s}b"]), dstr(W1(s, 1) + 2, A_WTR, sl + 1280, tok=f"T{s}")]
    p += xrd(0) + xrd(1)
    trdone = -1
    G = {}
    for n, (c, s) in enumerate(steps):
        nxt = next((ss for cc, ss in steps[n:] if cc == 0), None)
        m = []
        if nxt is not None and nxt > trdone:
            m += trw(nxt); trdone = nxt
        if s == 0 and c >= 3: W.drain(until=G[c - 3][-1])
        if n + 2 < len(steps): m += xrd(n + 2)
        a = ACC[ACCOF[c]]
        m += [mfma('mfma32', a, FB[n % 3], W1(s, 0), first=(s == 0)), mfma('mfma32', a + 16, FB[n % 3], W1(s, 1), first=(s == 0))]
        W.run(m, side_per=2.0 if c == 4 else 1.0)
        if c == 0 and s + 5 < 16: p += w1dma(s + 5)
        if c == 0 and s == 15:
            p += stamp("S1")
            p += dwdma()
            V(f"v_subrev_u32 v{A_YTR}, s{S_HB}, v{A_WTR}", A_YTR, [A_WTR])
            V(f"v_add_u32 v{A_YTR}, {XB}, v{A_YTR}", A_YTR, [A_YTR])
            V(f"v_xor_b32 v{A_OW1}, 16, v{A_OW0}", A_OW1, [A_OW0])
        if s == 15 and c < 4:
            G[c] = glu(c, a); W.push(G[c], hold=0 if W.q else 2)
        if c == 3 and s == 15:
            W.drain(until=G[2][-1])
            for k in range(4): W.pushside([w2rd(k)])
            for k in range(4, 8): W.pushside([w2dma(k)])
        if c == 4:
            if s <= 4:
                fr = [(g, t) for g in range(2) for t in range(9) if (TT(g, t) - 128) // 8 == s]
                W.pushside([dstr(TT(g, t), A_TTR, t * 256 + g * 32, needv=["D0", "D1", "D2"]) for g, t in fr])
                W.pushside([[bperm(TT(g, t), A_BP, TT(g, t)), bperm(TT(g, t) + 1, A_BP, TT(g, t) + 1)] for g, t in fr])
            if s == 5:
                W.drainside()
                hw = [x for x in G[3] if x.k == 'dsw'][1]
                assert any(x is hw for x in W.q)
                for k in range(4, 8): W.pushside([w2rd(k)])
                for k in range(8, 12): W.pushside([w2dma(k)])
            if s == 6: p += convrd(0, 0, CW[0])
            if s == 8:
                W.run(conv(0, CW[0])); p += convrd(0, 1, CW[0])
                W.push(silu(0, 0, TMP, G_X))
            if s == 10:
                W.run(conv(1, CW[0])); p += convrd(1, 0, CW[0])
                S01 = silu(0, 1, TMP, G_X); W.push(S01)
            if s == 11: W.drainside(); p += convrd(1, 1, CW[1])
            if s == 13:
                for k in range(8, 12): W.pushside([w2rd(k)])
                for k in range(12, 16): W.pushside([w2dma(k)])
    W.drainside()
    while len(W.q) > len(S01): W.p.append(W.q.pop(0))
    W.run(conv(0, CW[0]))
    G[4] = glu(4, ACC[1])
    W.drain()
    g4 = G[4]; cut = len(g4) // 2
    for j in range(1, 5):
        p += [bar(lg0=True)] + stamp(f"Y{j-1}")
        for k in range(len(YB) - 1): p += yrd(j - 1, k)
        pre = {}
        if j == 1:
            for k in range(12, 16): pre[k - 4] = w2rd(k)
        if j < 4:
            S0 = silu(j, 0, TMP, G_X); S1 = silu(j, 1, TMP, G_X)
            W.push(S0)
            if j >= 2: W.push(outp(j - 2))
            W.run(conv(1, CW[1]))
            if j == 1: W.push(g4[:cut])
            if j == 2: W.push(g4[cut:])
            mid = len(S1) // 2
            W.push(S1[:mid])
            if j >= 2: W.push(outst(j - 2))
            W.push(S1[mid:])
            if j == 1: p += convrd(j + 1, 0, CW[0]) + convrd(j + 1, 1, CW[1])
            W.run(g2(j - 1, pre), b32=P['b32'] + (12 if j < 3 else 0))
            if j == 2:
                W.drain(until=g4[-1]); p += convrd(j + 1, 0, CW[0]) + convrd(j + 1, 1, CW[1])
                for _ in range(8):
                    if W.q: p.append(W.q.pop(0))
            if j < 3:
                assert not any(x is S0[-1] for x in W.q)
                W.run(conv(0, CW[0]))
            W.drain()
        else:
            W.push(outp(2)); W.push(outst(2), hold=4)
            W.run(g2(3, pre)); W.drain()
            p += outp(3) + outst(3)
    p += stamp("end")
    body, st = finalize(p)
    if P['stamps']:
        body.append("s_waitcnt vmcnt(0)"); i = len(stamps); stamps.append("ack")
        body += [f"s_memtime s[{60+2*i}:{61+2*i}]", "s_memrealtime s[34:35]", "s_waitcnt lgkmcnt(0)", "s_mov_b32 s6, 0x1000000", "s_mov_b32 s7, 0x20000",
                 "s_lshl_b32 s53, s2, 3", f"s_add_u32 s53, s53, s{S_WV}", "s_lshl_b32 s53, s53, 8", "v_mov_b32 v2, s53"]
        if P.get('dbg'):
            body += ["s_mov_b32 s6, 256", f"s_sub_u32 s53, s53, {P['dbg']*2048}", "v_mov_b32 v2, s53", "s_sub_u32 s53, s34, s56", "v_mov_b32 v3, s53", "buffer_store_dword v3, v2, s[4:7], 0 offen offset:60", "s_nop 1"]
        for i in range(len(stamps)):
            body += [f"s_sub_u32 s53, s{60+2*i}, s58", "v_mov_b32 v3, s53", f"buffer_store_dword v3, v2, s[4:7], 0 offen offset:{4*i}", "s_nop 1"]
        body += ["v_mov_b32 v3, s56", "buffer_store_dword v3, v2, s[4:7], 0 offen offset:248", "s_nop 1", "v_mov_b32 v3, s34",
                 "buffer_store_dword v3, v2, s[4:7], 0 offen offset:252"]
    n = P['name'] + "_kernel"
    txt = f"""; conformer conv module: x@w1 -> GLU -> depthwise conv(31) -> SiLU -> @w2, fused; generated by gen/gen.py
; @launch grid=(250,1,1) block=(512,1,1) lds=163840
.amdgcn_target "amdgcn-amd-amdhsa--gfx950"
.text
.globl {n}
.p2align 8
.type {n},@function
{n}:
""" + "\n".join("    " + l for l in body) + f"""
L_end:
    s_endpgm
.section .rodata,"a"
.p2align 6
.amdhsa_kernel {n}
  .amdhsa_next_free_vgpr 256
  .amdhsa_next_free_sgpr 102
  .amdhsa_accum_offset 256
  .amdhsa_group_segment_fixed_size 0
  .amdhsa_kernarg_size 56
  .amdhsa_user_sgpr_count 2
  .amdhsa_user_sgpr_kernarg_segment_ptr 1
  .amdhsa_system_sgpr_workgroup_id_x 1
.end_amdhsa_kernel
"""
    return txt, st, stamps

if __name__ == "__main__":
    out = sys.argv[1]; kw = {}
    for a in sys.argv[2:]:
        k, v = a.split("="); kw[k] = eval(v) if v and (v[0].isdigit() or v in ("True", "False")) else v
    t, st, stamps = gen(**kw)
    open(out, "w").write(t); print(st, stamps)
```
